```python
import torch

def _softmax(x, axis=-1):
    return torch.softmax(x, dim=axis)
def _gelu(x):
    return torch.nn.functional.gelu(x, approximate="tanh")
def _silu(x):
    return torch.nn.functional.silu(x)
def _sigmoid(x):
    return torch.sigmoid(x)
def _layernorm(x, axis=-1, eps=1e-5):
    m = x.mean(dim=axis, keepdim=True)
    v = x.var(dim=axis, keepdim=True, unbiased=False)
    return (x - m) / torch.sqrt(v + eps)
def _scatter_add(tgt, idx, src, axis=0):
    return tgt.clone().index_add_(axis, idx, src)
def _segment_sum(src, seg, n):
    out = torch.zeros((n,) + src.shape[1:], dtype=src.dtype)
    return out.index_add_(0, seg, src)
def _pad(x, pw):
    flat = tuple(v for pair in reversed(pw) for v in pair)
    return torch.nn.functional.pad(x, flat)

kernel_name = 'gated_mix__spectral_fnet__dense_activation_relu__prompt'

def setup_inputs():

    _w = (lambda a: (lambda t: t.to(torch.bfloat16) if t.is_floating_point() else t)(torch.as_tensor(a)))
    def _A_setup():
        B, S, D = 1, 2048, 1024
        ns = torch.arange(S)[:, None] * torch.arange(S)[None, :]
        nd = torch.arange(D)[:, None] * torch.arange(D)[None, :]
        Ws_re = torch.cos(-2.0 * torch.pi * ns / S).to(float)
        Ws_im = torch.sin(-2.0 * torch.pi * ns / S).to(float)
        Wd_re = torch.cos(-2.0 * torch.pi * nd / D).to(float)
        Wd_im = torch.sin(-2.0 * torch.pi * nd / D).to(float)
        return {
            "x": _w((lambda *s: torch.randn(*s, dtype=torch.bfloat16) * 0.05)(B, S, D)),
            "dft_seq_re": _w(Ws_re),
            "dft_seq_im": _w(Ws_im),
            "dft_hid_re": _w(Wd_re),
            "dft_hid_im": _w(Wd_im),
        }
    _A_in = _A_setup()

    def _B_setup():
        B, S, D, Dff = 1, 2048, 1024, 3584
        return {
            "x": _w((lambda *s: torch.randn(*s, dtype=torch.bfloat16) * 0.05)(B, S, D)),
            "w1": _w((lambda *s: torch.randn(*s, dtype=torch.bfloat16) * 0.4)(D, Dff)),
            "w2": _w((lambda *s: torch.randn(*s, dtype=torch.bfloat16) * 0.4)(Dff, D)),
        }
    _B_in = _B_setup()

    return {
        "A_x": _A_in["x"],
        "A_dft_seq_re": _A_in["dft_seq_re"],
        "A_dft_seq_im": _A_in["dft_seq_im"],
        "A_dft_hid_re": _A_in["dft_hid_re"],
        "A_dft_hid_im": _A_in["dft_hid_im"],
        "B_x": _B_in["x"],
        "B_w1": _B_in["w1"],
        "B_w2": _B_in["w2"],
        "gate_w": _w((lambda *s: torch.randn(*s, dtype=torch.bfloat16) * 0.05)(1024) * 16.0),
    }

def reference(A_x, A_dft_seq_re, A_dft_seq_im, A_dft_hid_re, A_dft_hid_im, B_x, B_w1, B_w2, gate_w):
    def _A_ref(x, dft_seq_re, dft_seq_im, dft_hid_re, dft_hid_im):
        a = torch.einsum("bsd,ed->bse", x, dft_hid_re)
        b = torch.einsum("bsd,ed->bse", x, dft_hid_im)
        y = torch.einsum("ts,bse->bte", dft_seq_re, a) - torch.einsum("ts,bse->bte", dft_seq_im, b)
        return y

    def _B_ref(x, w1, w2):
        h = torch.einsum("bsd,df->bsf", x, w1)
        zero = torch.zeros_like(h)
        h = torch.maximum(h, zero)
        return torch.einsum("bsf,fd->bsd", h, w2)

    x = A_x
    g = _sigmoid((x * gate_w).sum(-1, keepdims=True))
    a = _A_ref(x, A_dft_seq_re, A_dft_seq_im, A_dft_hid_re, A_dft_hid_im)
    b = _B_ref(x, B_w1, B_w2)
    return g * a + (1 - g) * b
```

```python
import re

REG_RE = re.compile(r"\b([vsa])(\d+)\b|\b([vsa])\[(\d+):(\d+)\]|\b(vcc|m0|exec|scc)\b")
TRANS = ("v_exp_f32", "v_log_f32", "v_rcp_f32", "v_rsq_f32", "v_sqrt_f32", "v_sin_f32", "v_cos_f32")


def regs_of(tok):
    out = set()
    for m in REG_RE.finditer(tok):
        if m.group(1):
            out.add((m.group(1), int(m.group(2))))
        elif m.group(3):
            for i in range(int(m.group(4)), int(m.group(5)) + 1):
                out.add((m.group(3), i))
        else:
            out.add((m.group(6), 0))
    return out


def split_ops(s):
    ops, depth, cur = [], 0, ""
    for ch in s:
        if ch == "[":
            depth += 1
        if ch == "]":
            depth -= 1
        if ch == "," and depth == 0:
            ops.append(cur.strip())
            cur = ""
        else:
            cur += ch
    if cur.strip():
        ops.append(cur.strip())
    return ops


class Ins:
    __slots__ = ("text", "op", "cls", "defs", "uses", "states", "passes", "srcc", "line")

    def __init__(self, text, line):
        self.text, self.line = text, line
        t = text.split(";")[0].strip()
        parts = t.split(None, 1)
        op = parts[0]
        ops = split_ops(parts[1]) if len(parts) > 1 else []
        self.op, self.states, self.passes, self.srcc = op, 1, 0, set()
        d, u = set(), set()
        if op == "s_nop":
            self.cls, self.states = "nop", int(ops[0], 0) + 1
        elif op.startswith("v_mfma"):
            self.cls = "mfma"
            self.passes = 8 if "32x32" in op else 4
            d = regs_of(ops[0])
            u = regs_of(ops[1]) | regs_of(ops[2]) | regs_of(ops[3])
            self.srcc = regs_of(ops[3])
        elif op.startswith("v_"):
            self.cls = "trans" if any(op.startswith(x) for x in TRANS) else "valu"
            if op.startswith("v_cmp"):
                d = regs_of(ops[0])
                u = set().union(*[regs_of(o) for o in ops[1:]])
            elif op.startswith(("v_swap", "v_permlane")):
                d = regs_of(ops[0]) | regs_of(ops[1])
                u = set(d)
            elif op.startswith(("v_add_co", "v_sub_co", "v_addc_co", "v_subb_co")):
                d = regs_of(ops[0]) | regs_of(ops[1])
                u = set().union(*[regs_of(o) for o in ops[2:]])
            else:
                d = regs_of(ops[0])
                u = set().union(*[regs_of(o) for o in ops[1:]]) if len(ops) > 1 else set()
                if op.startswith(("v_fmac", "v_mac", "v_dot2c", "v_writelane", "v_pk_fmac")):
                    u |= d
                if op.startswith("v_cndmask") and len(ops) == 3:
                    u.add(("vcc", 0))
        elif op.startswith("ds_"):
            self.cls = "ds"
            if op.startswith(("ds_read", "ds_bpermute", "ds_swizzle", "ds_permute")):
                d = regs_of(ops[0])
                u = set().union(*[regs_of(o) for o in ops[1:]])
            else:
                u = set().union(*[regs_of(o) for o in ops])
        elif op.startswith(("buffer_", "global_")):
            self.cls = "vmem"
            lds = bool(re.search(r"\blds\b", t))
            if op in ("buffer_wbl2", "buffer_inv"):
                pass
            elif "load" in op and not lds:
                d = regs_of(ops[0])
                u = set().union(*[regs_of(o) for o in ops[1:]])
                if "d16" in op:
                    u |= d
            else:
                u = set().union(*[regs_of(o) for o in ops])
                if lds:
                    u.add(("m0", 0))
                    self.cls = "dma"
        elif op.startswith(("s_load", "s_memtime", "s_memrealtime", "s_buffer_load")):
            self.cls = "smem"
            d = regs_of(ops[0])
            u = set().union(*[regs_of(o) for o in ops[1:]]) if len(ops) > 1 else set()
        elif op.startswith("s_"):
            self.cls = "salu"
            nodst = ("s_cmp", "s_cbranch", "s_branch", "s_waitcnt", "s_barrier", "s_endpgm", "s_sleep",
                     "s_setprio", "s_bitcmp")
            if op.startswith(nodst):
                u = set().union(*[regs_of(o) for o in ops]) if ops else set()
            else:
                d = regs_of(ops[0])
                u = set().union(*[regs_of(o) for o in ops[1:]]) if len(ops) > 1 else set()
                if "saveexec" in op:
                    d.add(("exec", 0))
        else:
            raise ValueError("unknown instruction: " + text)
        self.defs, self.uses = d, u


def is_valu(i):
    return i.cls in ("valu", "trans")


def need(p, c):
    n = 0
    vd = {r for r in p.defs if r[0] in "va" and r[0] != "vcc"}
    sd = {r for r in p.defs if r[0] == "s" or r[0] == "vcc"}
    if is_valu(p):
        if c.cls == "mfma" and (vd & c.uses):
            n = max(n, 2)
        if is_valu(c) and (sd & c.uses) and not c.op.startswith(("v_addc_co", "v_subb_co")):
            n = max(n, 2)
        if c.cls in ("vmem", "dma") and (sd & c.uses):
            n = max(n, 5)
        if c.op.startswith(("v_readfirstlane", "v_readlane")) and (vd & c.uses):
            n = max(n, 1)
        if c.op.startswith("v_permlane") and (vd & c.uses):
            n = max(n, 2)
        if "dpp" in c.text or "row_" in c.text or "quad_perm" in c.text:
            if is_valu(c) and (vd & c.uses):
                n = max(n, 2)
        if p.cls == "trans" and is_valu(c) and c.cls != "trans" and (vd & c.uses):
            n = max(n, 1)
    if p.cls == "mfma":
        w = {4: 8, 8: 12}[p.passes]
        if c.cls == "mfma":
            ab = c.uses - c.srcc
            if p.defs & ab:
                n = max(n, w)
            if p.defs & c.srcc and not (p.defs == c.srcc and p.passes == c.passes):
                n = max(n, {4: 6, 8: 10}[p.passes])
            if p.defs & c.defs and not (p.defs == c.defs):
                n = max(n, {4: 6, 8: 10}[p.passes])
        elif is_valu(c):
            if p.defs & (c.uses | c.defs):
                n = max(n, w)
            if p.srcc & c.defs:
                n = max(n, {4: 3, 8: 7}[p.passes])
        elif c.cls in ("ds", "vmem", "dma"):
            if p.defs & (c.uses | c.defs):
                n = max(n, w)
    if p.cls == "salu" and ("m0", 0) in p.defs and c.cls == "dma":
        n = max(n, 1)
    if p.cls == "vmem" and re.search(r"store_dwordx[34]", p.op) and is_valu(c):
        data = regs_of(split_ops(p.text.split(None, 1)[1])[0 if p.op.startswith("buffer") else 1])
        if data & c.defs:
            n = max(n, 2)
    return n


def check(lines, name=""):
    seq, stack = [], []
    for ln, t in enumerate(lines):
        s = t.strip()
        if s.startswith(";@loop"):
            stack.append(len(seq))
            continue
        if s.startswith(";@endloop"):
            st = stack.pop()
            seq.extend(seq[st:st + 64])
            seq.append(None)
            continue
        if s.startswith(";@cut"):
            seq.append(None)
            continue
        if not s or s.startswith((";", ".")) or s.endswith(":"):
            continue
        seq.append(Ins(s, ln))
    problems = 0
    for i, c in enumerate(seq):
        if c is None:
            continue
        dist = 0
        for j in range(i - 1, max(-1, i - 24), -1):
            p = seq[j]
            if p is None:
                break
            n = need(p, c)
            if n > dist:
                problems += 1
                print(f"HAZARD {name}: need {n} have {dist}: line {p.line}: {p.text}  ->  line {c.line}: {c.text}")
            dist += p.states
            if dist >= 20:
                break
    return problems


class Asm:
    def __init__(self):
        self.lines = []

    def __call__(self, text):
        for t in text.split("\n"):
            t = t.strip()
            if not t:
                continue
            if t.endswith(":") or t.startswith((";", ".")):
                self.lines.append(t)
            else:
                self.lines.append("    " + t)

    def text(self):
        return "\n".join(self.lines) + "\n"


def v(i, n=1):
    return f"v{i}" if n == 1 else f"v[{i}:{i + n - 1}]"


def s(i, n=1):
    return f"s{i}" if n == 1 else f"s[{i}:{i + n - 1}]"
```

```python
from asmlib import v, s

MF32 = "v_mfma_f32_32x32x16_bf16"
XP = 2064
ZS = 66560
ZPART = 8 * 66 * 64
GW = ZS + 2 * ZPART
ALT = GW + 2064
ZERO = ALT + 2064
ACC = ZERO + 2048 + 16
CC = ACC + 256
CF = ZS
assert CC + 4096 <= 147456

FR, FI, A1, A2 = 0, 8, 16, 24
TC, TS = 32, 48
D2 = 64
XA = 128
DA, DB = 144, 176
YP = 208
TMP = 224
AZ = 232
VZW = 248
VXA = 252
VL = 255


def cos_frag(a, dst, vbase, vstep, tmp, vbase4=None):
    a(f"v_mov_b32 v{tmp}, v{vbase}")
    for j in range(1, 8):
        if j == 4 and vbase4 is not None:
            a(f"v_fma_f32 v{tmp + 4}, v{vstep}, 4.0, v{vbase4}")
        else:
            a(f"v_add_f32 v{tmp + j}, v{tmp + j - 1}, v{vstep}")
    for j in range(8):
        a(f"v_cos_f32 v{tmp + j}, v{tmp + j}")
    a("s_nop 0")
    for j in range(4):
        a(f"v_cvt_pk_bf16_f32 v{dst + j}, v{tmp + 2 * j}, v{tmp + 2 * j + 1}")


def fft_front(a, CFG):
    from gen import srd, stamp, stamp_flush, KA_GW, WS_YY, YY_BYTES, WS_G, S
    yyfl = CFG["yy_store_flags"]
    a(f"s_load_dwordx2 s[4:5], s[0:1], {KA_GW}")
    a(f"v_mov_b32 v{VL}, v240")
    a("s_sub_u32 s27, s26, 28")
    a("s_lshl_b32 s27, s27, 3")
    a("s_add_u32 s27, s27, s25")
    a("s_mov_b32 s28, 2")

    def issue_x():
        a(f"v_lshlrev_b32 v{TMP}, 4, v{VL}")
        a("s_lshl_b32 s29, s24, 2")
        a(f"s_mul_i32 s30, s29, {XP}")
        a("s_lshl_b32 s31, s29, 6")
        a("s_add_u32 s31, s31, s27")
        a("s_lshl_b32 s31, s31, 11")
        for j in range(4):
            a(f"s_add_u32 m0, s30, {j * XP}")
            a(f"s_add_u32 s32, s31, {j * 64 * 2048}")
            a(f"buffer_load_dwordx4 v{TMP}, s[12:15], s32 offen lds")
            a(f"buffer_load_dwordx4 v{TMP}, s[12:15], s32 offen offset:1024 lds")

    issue_x()
    a("s_waitcnt lgkmcnt(0)")
    srd(a, 16, 4, 2048)
    srd(a, 20, 8, YY_BYTES, WS_YY)
    srd(a, 36, 8, S * 4, WS_G)
    a("s_cmp_lg_u32 s24, 0")
    a("s_cbranch_scc1 fft_t1")
    a(f"s_mov_b32 m0, {GW}")
    a("s_nop 0")
    a(f"buffer_load_dwordx4 v{TMP}, s[16:19], 0 offen lds")
    a(f"buffer_load_dwordx4 v{TMP}, s[16:19], 0 offen offset:1024 lds")
    a("fft_t1:")
    a(f"v_lshlrev_b32 v{TMP + 1}, 5, v{VL}")
    a("s_cmp_eq_u32 s24, 1")
    a("s_cselect_b32 s29, 0xbf803f80, 0")
    a(f"s_mov_b32 s30, {ZERO}")
    a(f"s_cselect_b32 s30, {ALT}, s30")
    for i in range(4):
        a(f"v_mov_b32 v{TMP + 4 + i}, s29")
    a(f"v_add_u32 v{TMP + 1}, s30, v{TMP + 1}")
    a("s_sub_u32 s31, s24, 1")
    a("s_cmp_gt_u32 s31, 1")
    a("s_cbranch_scc1 fft_t2")
    a(f"ds_write_b128 v{TMP + 1}, v[{TMP + 4}:{TMP + 7}]")
    a(f"ds_write_b128 v{TMP + 1}, v[{TMP + 4}:{TMP + 7}] offset:16")
    a("fft_t2:")
    a("s_cmp_lg_u32 s24, 3")
    a("s_cbranch_scc1 fft_t3")
    a(f"v_and_b32 v{TMP + 1}, 15, v{VL}")
    a(f"v_lshlrev_b32 v{TMP + 1}, 2, v{TMP + 1}")
    a(f"v_add_u32 v{TMP + 1}, {ZS + ZPART + 64 * 64}, v{TMP + 1}")
    a(f"v_mov_b32 v{TMP + 2}, 0")
    a(f"ds_write_b32 v{TMP + 1}, v{TMP + 2}")
    a("fft_t3:")

    L31, H, FE = TMP + 8, TMP + 9, TMP + 10
    a(f"v_and_b32 v{L31}, 31, v{VL}")
    a(f"v_lshrrev_b32 v{H}, 5, v{VL}")
    a("s_lshr_b32 s29, s24, 1")
    a("s_and_b32 s30, s24, 1")
    a("s_cmp_lt_u32 s29, 2")
    a("s_cselect_b32 s31, 31, 15")
    a("s_cselect_b32 s32, 8, 4")
    a("s_cselect_b32 s33, 0, 4")
    VI, VB, VS_ = 100, 101, 102
    a(f"v_and_b32 v{VI}, s31, v{VL}")
    a(f"v_cvt_f32_u32 v{VS_}, v{VI}")
    a(f"v_mul_f32 v{VS_}, 0x3d000000, v{VS_}")
    a(f"v_mul_u32_u24 v{VB}, s32, v{H}")
    a("s_lshl_b32 s34, s30, 4")
    a(f"v_add_u32 v{VB}, s34, v{VB}")
    a(f"v_cvt_f32_u32 v{VB}, v{VB}")
    a(f"v_mul_f32 v{VB}, v{VB}, v{VS_}")
    a(f"v_bfe_u32 v{VI}, v{VL}, 4, 1")
    a("s_cmp_lt_u32 s29, 2")
    a("s_cselect_b32 s34, 0, 1")
    a(f"v_mul_u32_u24 v{VI}, s34, v{VI}")
    a("s_cmp_eq_u32 s29, 1")
    a("s_cselect_b32 s35, 1, 0")
    a("s_cmp_eq_u32 s29, 3")
    a("s_cselect_b32 s35, 3, s35")
    a(f"v_add_u32 v{VI}, s35, v{VI}")
    a(f"v_cvt_f32_u32 v{VI}, v{VI}")
    a(f"v_mov_b32 v{VI + 3}, 0x3e800000")
    a(f"v_fmac_f32 v{VB}, v{VI}, v{VI + 3}")
    a(f"v_cvt_f32_u32 v{VI}, s33")
    a(f"v_fma_f32 v{VI + 4}, v{VI}, v{VS_}, v{VB}")
    cos_frag(a, 120, VB, VS_, 110, VI + 4)
    a("s_lshl_b32 s34, s24, 10")
    a(f"s_add_u32 s34, s34, {CF}")
    a(f"v_lshl_add_u32 v{VI}, v{VL}, 4, s34")
    a(f"ds_write_b128 v{VI}, v[120:123]")

    a(f"v_cvt_f32_u32 v{FE}, v{L31}")
    a(f"v_mul_f32 v{FE}, 0x3a800000, v{FE}")
    a(f"v_cvt_f32_u32 v{FE + 1}, v{H}")
    a(f"v_mul_f32 v{FE + 1}, 4.0, v{FE + 1}")
    a(f"v_mul_f32 v{FE + 1}, v{FE + 1}, v{FE}")
    for r in range(16):
        c = (r & 3) + 8 * (r >> 2)
        a(f"v_mov_b32 v{TS + r}, {float(c)}")
        a(f"v_fma_f32 v{TS + r}, v{TS + r}, v{FE}, v{FE + 1}")
    for r in range(16):
        a(f"v_cos_f32 v{TC + r}, v{TS + r}")
    for r in range(16):
        a(f"v_sin_f32 v{TS + r}, v{TS + r}")

    a(f"v_and_b32 v100, 7, v{VL}")
    a(f"v_mul_u32_u24 v100, 66, v100")
    a(f"v_bfe_u32 v101, v{VL}, 3, 2")
    a(f"v_add_u32 v100, v100, v101")
    a(f"v_lshl_add_u32 v100, v{H}, 4, v100")
    a("s_lshr_b32 s29, s24, 1")
    a("s_and_b32 s30, s24, 1")
    a("s_lshl_b32 s30, s30, 3")
    a(f"s_add_u32 s30, s30, {ZS}")
    for i in range(4):
        a(f"v_add_u32 v101, {4 * i}, v100")
        a("v_bfe_u32 v102, v101, 2, 2")
        a("v_xor_b32 v102, s29, v102")
        a("v_lshlrev_b32 v102, 4, v102")
        a("v_lshl_add_u32 v102, v101, 6, v102")
        a(f"v_add_u32 v{VZW + i}, s30, v102")
    a(f"v_bfe_u32 v100, v{VL}, 2, 2")
    a(f"v_lshl_add_u32 v100, v{H}, 3, v100")
    a("v_lshlrev_b32 v100, 6, v100")
    a(f"v_bfe_u32 v101, v{VL}, 4, 1")
    a("v_lshl_add_u32 v100, v101, 5, v100")
    a(f"v_and_b32 v101, 3, v{VL}")
    a("v_lshl_add_u32 v100, v101, 3, v100")
    a(f"s_mul_i32 s29, s24, {4 * XP}")
    a(f"v_add_u32 v{VXA}, s29, v100")
    a("s_waitcnt lgkmcnt(0)")
    a("s_barrier")
    a(f"v_lshlrev_b32 v100, 4, v{VL}")
    a(f"v_add_u32 v100, {CF}, v100")
    for i in range(8):
        a(f"ds_read_b128 v[{4 * i}:{4 * i + 3}], v100 offset:{i * 1024}")
    a("s_waitcnt vmcnt(0)")
    stamp(a, 1)

    a("fft_unit:")
    a("s_cmp_ge_u32 s24, 4")
    a("s_cbranch_scc1 fft_nocc")
    a(f"v_and_b32 v100, 31, v{VL}")
    a(f"v_lshrrev_b32 v101, 5, v{VL}")
    a("v_cvt_f32_u32 v102, v100")
    a("v_mul_f32 v103, 0x3d000000, v102")
    a("v_mul_f32 v102, 0x3a000000, v102")
    a("s_and_b32 s29, s24, 1")
    a("s_lshl_b32 s29, s29, 4")
    a("v_lshlrev_b32 v101, 3, v101")
    a("v_add_u32 v101, s29, v101")
    a("v_cvt_f32_u32 v101, v101")
    a("v_mul_f32 v101, v101, v103")
    a("v_cvt_f32_u32 v104, s27")
    a("v_fmac_f32 v101, v104, v102")
    a("s_cmp_ge_u32 s24, 2")
    a("s_cselect_b32 s29, 0xbe800000, 0")
    a("v_add_f32 v101, s29, v101")
    cos_frag(a, 120, 101, 103, 110)
    a("s_lshl_b32 s29, s24, 10")
    a(f"s_add_u32 s29, s29, {CC}")
    a(f"v_lshl_add_u32 v100, v{VL}, 4, s29")
    a("ds_write_b128 v100, v[120:123]")
    a("fft_nocc:")
    a("s_cmp_lg_u32 s24, 4")
    a("s_cbranch_scc1 fft_noacc")
    a(f"v_lshlrev_b32 v100, 2, v{VL}")
    a(f"v_add_u32 v100, {ACC}, v100")
    a("v_mov_b32 v101, 0")
    a("ds_write_b32 v100, v101")
    a("fft_noacc:")
    a("s_waitcnt vmcnt(16) lgkmcnt(0)")
    a("s_barrier")

    a(f"v_and_b32 v100, 31, v{VL}")
    a(f"v_lshrrev_b32 v101, 5, v{VL}")
    a("s_lshl_b32 s29, s24, 8")
    a("v_lshl_add_u32 v102, v101, 4, s29")
    a(f"v_mul_u32_u24 v103, {XP}, v100")
    a("v_add_u32 v103, v103, v102")
    a(f"v_mov_b32 v104, {ZERO}")
    a(f"v_mov_b32 v105, {ALT}")
    a("v_cmp_eq_u32 vcc, 1, v100")
    a("s_nop 1")
    a("v_cndmask_b32 v104, v104, v105, vcc")
    a(f"v_mov_b32 v105, {GW}")
    a("v_cmp_eq_u32 vcc, 0, v100")
    a("s_nop 1")
    a("v_cndmask_b32 v104, v104, v105, vcc")
    a("v_add_u32 v104, v104, v102")
    for q in range(8):
        a(f"ds_read_b128 v[{128 + 8 * q}:{131 + 8 * q}], v104 offset:{32 * q}")
        a(f"ds_read_b128 v[{132 + 8 * q}:{135 + 8 * q}], v103 offset:{32 * q}")
    for q in range(8):
        a(f"s_waitcnt lgkmcnt({min(15, 14 - 2 * q)})")
        c = "0" if q == 0 else "v[64:79]"
        a(f"{MF32} v[64:79], v[{128 + 8 * q}:{131 + 8 * q}], v[{132 + 8 * q}:{135 + 8 * q}], {c}")
    a(f"v_lshlrev_b32 v100, 2, v100")
    a(f"v_add_u32 v100, {ACC}, v100")
    def xreads(j, dst):
        for q in range(2):
            for u in range(2):
                a(f"ds_read_b64_tr_b16 v[{dst + 4 * q + 2 * u}:{dst + 4 * q + 2 * u + 1}], v{VXA} offset:{j * XP + q * 1024 + u * 256}")
    xreads(0, XA)
    xreads(1, XA + 8)
    a("s_nop 7")
    a("s_mov_b32 exec_hi, 0")
    a("ds_add_f32 v100, v64")
    a("ds_add_f32 v100, v65 offset:128")
    a("s_mov_b32 exec_hi, -1")

    def step_a(xa, d):
        a(f"{MF32} v[{d}:{d + 15}], v[{xa}:{xa + 3}], v[{FR}:{FR + 3}], 0")
        a(f"{MF32} v[{d + 16}:{d + 31}], v[{xa}:{xa + 3}], v[{FI}:{FI + 3}], 0")
        a(f"{MF32} v[{d}:{d + 15}], v[{xa + 4}:{xa + 7}], v[{FR + 4}:{FR + 7}], v[{d}:{d + 15}]")
        a(f"{MF32} v[{d + 16}:{d + 31}], v[{xa + 4}:{xa + 7}], v[{FI + 4}:{FI + 7}], v[{d + 16}:{d + 31}]")

    def twiddle(d):
        for p in range(8):
            r, i = d + 2 * p, d + 16 + 2 * p
            c, sn = TC + 2 * p, TS + 2 * p
            t = TMP + 4 * (p & 1)
            a(f"v_pk_mul_f32 v[{t}:{t + 1}], v[{r}:{r + 1}], v[{c}:{c + 1}]")
            a(f"v_pk_mul_f32 v[{t + 2}:{t + 3}], v[{i}:{i + 1}], v[{c}:{c + 1}]")
            a(f"v_pk_fma_f32 v[{t}:{t + 1}], v[{i}:{i + 1}], v[{sn}:{sn + 1}], v[{t}:{t + 1}]")
            a(f"v_pk_fma_f32 v[{t + 2}:{t + 3}], v[{r}:{r + 1}], v[{sn}:{sn + 1}], v[{t + 2}:{t + 3}] neg_lo:[1,0,0] neg_hi:[1,0,0]")
            a(f"v_cvt_pk_bf16_f32 v{YP + p}, v{t}, v{t + 1}")
            a(f"v_cvt_pk_bf16_f32 v{YP + 8 + p}, v{t + 2}, v{t + 3}")

    def step_b(d):
        a("s_nop 1")
        a(f"{MF32} v[{d}:{d + 15}], v[{A1}:{A1 + 3}], v[{YP}:{YP + 3}], 0")
        a(f"{MF32} v[{d}:{d + 15}], v[{A1 + 4}:{A1 + 7}], v[{YP + 4}:{YP + 7}], v[{d}:{d + 15}]")
        a(f"{MF32} v[{d}:{d + 15}], v[{A2}:{A2 + 3}], v[{YP + 8}:{YP + 11}], v[{d}:{d + 15}]")
        a(f"{MF32} v[{d}:{d + 15}], v[{A2 + 4}:{A2 + 7}], v[{YP + 12}:{YP + 15}], v[{d}:{d + 15}]")

    for pair in range(2):
        a("s_waitcnt lgkmcnt(0)")
        step_a(XA, DA)
        step_a(XA + 8, DB)
        if pair == 0:
            xreads(2, XA)
            xreads(3, XA + 8)
        else:
            a("s_nop 7")
        twiddle(DA)
        step_b(D2 + 32 * pair)
        twiddle(DB)
        step_b(D2 + 32 * pair + 16)
    a("s_nop 7")
    a("s_nop 3")
    for r in range(16):
        p, rr = r >> 3, r & 7
        t = TMP + 2 * (r & 3)
        a(f"v_cvt_pk_bf16_f32 v{t}, v{D2 + r}, v{D2 + 16 + r}")
        a(f"v_cvt_pk_bf16_f32 v{t + 1}, v{D2 + 32 + r}, v{D2 + 48 + r}")
        a(f"ds_write_b64 v{VZW + (rr & 3)}, v[{t}:{t + 1}] offset:{p * ZPART + (rr >> 2) * 2048}")
    a("s_waitcnt lgkmcnt(0)")
    a("s_barrier")
    stamp(a, 2)

    a("s_cmp_eq_u32 s28, 1")
    a("s_cbranch_scc1 fft_nonext")
    a("s_add_u32 s27, s27, 32")
    issue_x()
    a("s_sub_u32 s27, s27, 32")
    a("fft_nonext:")
    a("s_and_b32 s29, s24, 1")
    a("s_lshr_b32 s30, s24, 1")
    a("s_lshl_b32 s31, s29, 11")
    a(f"s_add_u32 s32, s31, {CC}")
    a(f"v_lshl_add_u32 v100, v{VL}, 4, s32")
    a("s_xor_b32 s31, s31, 2048")
    a(f"s_add_u32 s32, s31, {CC}")
    a(f"v_lshl_add_u32 v101, v{VL}, 4, s32")
    a(f"ds_read_b128 v[{AZ}:{AZ + 3}], v100")
    a(f"ds_read_b128 v[{AZ + 4}:{AZ + 7}], v100 offset:1024")
    a(f"ds_read_b128 v[{AZ + 8}:{AZ + 11}], v101")
    a(f"ds_read_b128 v[{AZ + 12}:{AZ + 15}], v101 offset:1024")
    a("s_cmp_lg_u32 s24, 0")
    a("s_cbranch_scc1 fft_nofin")
    a(f"v_and_b32 v100, 31, v{VL}")
    a(f"v_lshlrev_b32 v101, 2, v100")
    a(f"v_add_u32 v101, {ACC}, v101")
    a("ds_read_b32 v102, v101")
    a("ds_read_b32 v103, v101 offset:128")
    a("s_waitcnt lgkmcnt(0)")
    a("v_mul_f32 v102, 0xbfb8aa3b, v102")
    a("v_exp_f32 v102, v102")
    a("v_cvt_pk_bf16_f32 v103, v103, v103")
    a("v_add_f32 v102, 1.0, v102")
    a("v_rcp_f32 v102, v102")
    a(f"v_lshlrev_b32 v104, 1, v100")
    a(f"v_add_u32 v104, {ZS + 64 * 64}, v104")
    a("ds_write_b16 v104, v103")
    a("s_and_b32 s31, s27, 31")
    a("s_lshl_b32 s31, s31, 6")
    a("s_lshr_b32 s32, s27, 5")
    a("s_add_u32 s31, s31, s32")
    a("s_lshl_b32 s31, s31, 2")
    a("v_lshlrev_b32 v104, 3, v100")
    a("buffer_store_dword v102, v104, s[36:39], s31 offen")
    a("fft_nofin:")
    a("s_lshr_b32 s31, s30, 1")
    a("s_xor_b32 s32, s31, s29")
    a("s_cmp_eq_u32 s32, 1")
    a("s_cselect_b32 s33, 0x80008000, 0")
    a("s_waitcnt lgkmcnt(0)")
    for i in range(8):
        a(f"v_xor_b32 v{AZ + 8 + i}, s33, v{AZ + 8 + i}")
    a("s_barrier")

    a(f"v_and_b32 v{TMP}, 31, v{VL}")
    a(f"v_lshrrev_b32 v{TMP + 1}, 5, v{VL}")
    a("s_lshl_b32 s32, s30, 5")
    a(f"v_add_u32 v{TMP + 2}, s32, v{TMP}")
    a(f"v_sub_u32 v{TMP + 3}, 127, v{TMP + 2}")
    a("s_cmp_eq_u32 s31, 1")
    a("s_cselect_b64 vcc, -1, 0")
    a(f"v_cndmask_b32 v{TMP + 2}, v{TMP + 2}, v{TMP + 3}, vcc")
    BF = 192

    def tile_reads(i):
        b = BF + 16 * (i & 1)
        dir_c, mir_c = 66 * i, (1 if i == 0 else 66 * (8 - i))
        a(f"s_mov_b32 s32, {dir_c}")
        a("s_cmp_eq_u32 s31, 1")
        a(f"s_cselect_b32 s32, {mir_c}, s32")
        a(f"v_add_u32 v{TMP + 4}, s32, v{TMP + 2}")
        a(f"v_bfe_u32 v{TMP + 5}, v{TMP + 4}, 2, 2")
        a(f"v_xor_b32 v{TMP + 5}, v{TMP + 5}, v{TMP + 1}")
        a(f"v_lshlrev_b32 v{TMP + 5}, 4, v{TMP + 5}")
        a(f"v_lshl_add_u32 v{TMP + 4}, v{TMP + 4}, 6, v{TMP + 5}")
        a(f"v_add_u32 v{TMP + 4}, {ZS}, v{TMP + 4}")
        a(f"v_xor_b32 v{TMP + 5}, 32, v{TMP + 4}")
        a(f"ds_read_b128 v[{b}:{b + 3}], v{TMP + 4}")
        a(f"ds_read_b128 v[{b + 4}:{b + 7}], v{TMP + 5}")
        a(f"ds_read_b128 v[{b + 8}:{b + 11}], v{TMP + 4} offset:{ZPART}")
        a(f"ds_read_b128 v[{b + 12}:{b + 15}], v{TMP + 5} offset:{ZPART}")

    tile_reads(0)
    for i in range(8):
        if i < 7:
            tile_reads(i + 1)
            a("s_waitcnt lgkmcnt(4)")
        else:
            a("s_waitcnt lgkmcnt(0)")
        b, d = BF + 16 * (i & 1), D2 + 16 * i
        a(f"{MF32} v[{d}:{d + 15}], v[{AZ}:{AZ + 3}], v[{b}:{b + 3}], 0")
        a(f"{MF32} v[{d}:{d + 15}], v[{AZ + 4}:{AZ + 7}], v[{b + 4}:{b + 7}], v[{d}:{d + 15}]")
        a(f"{MF32} v[{d}:{d + 15}], v[{AZ + 8}:{AZ + 11}], v[{b + 8}:{b + 11}], v[{d}:{d + 15}]")
        a(f"{MF32} v[{d}:{d + 15}], v[{AZ + 12}:{AZ + 15}], v[{b + 12}:{b + 15}], v[{d}:{d + 15}]")
    a(f"v_lshlrev_b32 v{TMP + 1}, 14, v{TMP + 1}")
    a(f"v_lshl_add_u32 v{TMP}, v{TMP}, 4, v{TMP + 1}")
    a("s_lshl_b32 s32, s27, 6")
    a("s_add_u32 s32, s32, s29")
    a("s_lshl_b32 s32, s32, 11")
    a("s_lshl_b32 s33, s30, 9")
    a("s_add_u32 s32, s32, s33")
    a("s_nop 5")
    for r in range(16):
        o = BF + 4 * (r & 7)
        for k in range(4):
            a(f"v_cvt_pk_bf16_f32 v{o + k}, v{D2 + 32 * k + r}, v{D2 + 32 * k + 16 + r}")
        a(f"s_add_u32 s33, s32, {((r & 3) + 8 * (r >> 2)) * 4096}")
        a(f"buffer_store_dwordx4 v[{o}:{o + 3}], v{TMP}, s[20:23], s33 offen {yyfl}")
    stamp(a, 3)
    a("s_add_u32 s27, s27, 32")
    a("s_sub_u32 s28, s28, 1")
    a("s_cmp_lg_u32 s28, 0")
    a("s_cbranch_scc1 fft_unit")
    if CFG["stamps"]:
        a("s_waitcnt vmcnt(0)")
    stamp(a, 4)
    stamp_flush(a, 0)
```

```python
import sys
from asmlib import Asm, check, v, s

NAME = "gated_mix__spectral_fnet__dense_activation_relu__prompt"
S, D, F = 2048, 1024, 3584

KA_X, KA_SRE, KA_SIM, KA_HRE, KA_HIM, KA_BX, KA_W1, KA_W2, KA_GW, KA_OUT, KA_DBG, KA_WS = [8 * i for i in range(12)]

WS_H = 0
H_BYTES = 128 * 112 * 1024
WS_YY = 0x1000000
YY_BYTES = 64 * 32 * 2 * 2048
WS_G = 0x1800000
WS_FLAG = 0x1810000
WS_PART = 0x1900000
PART_BYTES = 256 * 32768

CFG = dict(h_store_flags="", yy_store_flags="", prefetch=True, fft=True, stamps=False)


def srd(a, reg, base, nbytes, off=0):
    if off:
        a(f"s_add_u32 s{reg}, s{base}, {off}")
        a(f"s_addc_u32 s{reg + 1}, s{base + 1}, 0")
    else:
        a(f"s_mov_b32 s{reg}, s{base}")
        a(f"s_mov_b32 s{reg + 1}, s{base + 1}")
    a(f"s_mov_b32 s{reg + 2}, {nbytes}")
    a(f"s_mov_b32 s{reg + 3}, 0x20000")


WS_STAMP = 0x2800000


def stamp(a, j):
    if CFG["stamps"]:
        op = "s_memtime" if CFG["stamps"] == "cyc" else "s_memrealtime"
        a(f"{op} s[{92 + 2 * j}:{93 + 2 * j}]")


def stamp_flush(a, kern):
    if not CFG["stamps"]:
        return
    a("s_waitcnt lgkmcnt(0)")
    a(f"s_add_u32 s4, s8, {WS_STAMP + kern * 256 * 8 * 64}")
    a("s_addc_u32 s5, s9, 0")
    a("s_mov_b32 s6, 0x100000")
    a("s_mov_b32 s7, 0x20000")
    a("s_lshl_b32 s3, s2, 3")
    a("s_add_u32 s3, s3, s24")
    a("s_lshl_b32 s3, s3, 6")
    a("v_mov_b32 v250, s3")
    for j in range(5):
        a(f"v_mov_b32 v251, s{92 + 2 * j}")
        a(f"buffer_store_dword v251, v250, s[4:7], 0 offen offset:{4 * j}")
        a("s_nop 1")
    a("s_waitcnt vmcnt(0)")


MF16 = "v_mfma_f32_16x16x32_bf16"
MF32 = "v_mfma_f32_32x32x16_bf16"


def dma_stage(a, nins, vsel, srd_reg, kbase, cbase, m0base):
    for j in range(nins):
        if j % 4 == 0:
            a(f"s_add_u32 m0, s{m0base}, {j * 1024}")
        a(f"s_add_u32 s{cbase + nins}, s{kbase}, s{cbase + j}")
        a(f"buffer_load_dwordx4 v{vsel(j)}, s[{srd_reg}:{srd_reg + 3}], s{cbase + nins} offen offset:{(j % 4) * 1024} lds")


G1_STAGE = 49152
G1_NST = 3
G1_STEPS = 16


def g1_compute(a):
    ACC = lambda mt, nt: 4 * (nt * 4 + mt)
    PT, PW, QT, QW = 128, 160, 176, 208
    VT0, VT1, VW = 224, 225, 226
    a("k1_g1_compute:")
    a("s_and_b32 s29, s24, 1")
    a("s_lshr_b32 s30, s24, 1")
    a("v_and_b32 v241, 15, v240")
    a("v_lshrrev_b32 v242, 4, v240")
    a("v_and_b32 v243, 7, v241")
    a("v_xor_b32 v243, v243, v242")
    a("v_lshlrev_b32 v243, 4, v243")
    a("v_lshl_add_u32 v243, v241, 7, v243")
    a("s_lshl_b32 s31, s29, 14")
    a(f"v_add_u32 v{VT0}, s31, v243")
    a(f"v_xor_b32 v{VT1}, 64, v{VT0}")
    a("v_bfe_u32 v243, v240, 2, 2")
    a("v_and_b32 v244, 3, v240")
    a("v_and_b32 v245, 1, v242")
    a("v_lshl_add_u32 v245, v245, 2, v243")
    a("v_lshl_add_u32 v246, v242, 3, v243")
    a("v_lshlrev_b32 v246, 8, v246")
    a("v_and_b32 v247, 1, v244")
    a("v_lshl_add_u32 v246, v247, 3, v246")
    a("v_add_u32 v246, 32768, v246")
    a("v_lshrrev_b32 v247, 1, v244")
    a("s_lshl_b32 s31, s30, 3")
    a("v_add_u32 v247, s31, v247")
    a("v_lshlrev_b32 v245, 1, v245")
    a("v_xor_b32 v247, v247, v245")
    for mt in range(4):
        a(f"v_xor_b32 v248, {2 * mt}, v247")
        a(f"v_lshl_add_u32 v{VW + mt}, v248, 4, v246")
    for i in range(128):
        a(f"v_mov_b32 v{i}, 0")

    def reads(T, W, h):
        r = []
        tw = lambda mt, u: f"ds_read_b64_tr_b16 v[{W + 4 * mt + 2 * u}:{W + 4 * mt + 2 * u + 1}], v{VW + mt} offset:{h * 8192 + u * 1024}"
        tt = lambda nt: f"ds_read_b128 v[{T + 4 * nt}:{T + 4 * nt + 3}], v{VT1 if h else VT0} offset:{nt * 2048}"
        r += [tw(0, 0), tw(0, 1), tt(0), tw(1, 0), tw(1, 1), tw(2, 0), tw(2, 1), tw(3, 0), tw(3, 1)]
        r += [tt(nt) for nt in range(1, 8)]
        return r

    def half(T, W, rd, extra=()):
        rd, extra = list(rd), list(extra)
        idx = 0
        for nt in range(8):
            for mt in range(4):
                d = ACC(mt, nt)
                a(f"{MF16} v[{d}:{d + 3}], v[{W + 4 * mt}:{W + 4 * mt + 3}], v[{T + 4 * nt}:{T + 4 * nt + 3}], v[{d}:{d + 3}]")
                if rd:
                    a(rd.pop(0))
                elif extra:
                    a(extra.pop(0))
                idx += 1

    a("s_mov_b32 s32, 0")
    a(f"s_mov_b32 s33, {G1_STEPS}")
    a("s_barrier")
    stamp(a, 1)
    for t in reads(PT, PW, 0):
        a(t)
    a("s_waitcnt lgkmcnt(0)")
    a(";@loop")
    a("k1_g1_loop:")
    adv = [f"s_add_u32 s34, s32, {G1_STAGE}",
           f"s_cmp_eq_u32 s34, {G1_STAGE * G1_NST}",
           "s_cselect_b32 s34, 0, s34",
           "s_sub_u32 s35, s34, s32",
           "s_mov_b32 s32, s34"]
    adv += [f"v_add_u32 v{r}, s35, v{r}" for r in (VT0, VT1, VW, VW + 1, VW + 2, VW + 3)]
    half(PT, PW, reads(QT, QW, 1), adv)
    a("s_waitcnt lgkmcnt(0)")
    a("s_barrier")
    half(QT, QW, reads(PT, PW, 0))
    a("s_sub_u32 s33, s33, 1")
    a("s_cmp_lg_u32 s33, 0")
    a("s_waitcnt lgkmcnt(0)")
    a("s_cbranch_scc1 k1_g1_loop")
    a(";@endloop")
    stamp(a, 2)
    a("s_lshl_b32 s34, s27, 4")
    a("s_lshl_b32 s35, s29, 3")
    a("s_add_u32 s34, s34, s35")
    a("s_mul_i32 s34, s34, 112")
    a("s_lshl_b32 s35, s28, 2")
    a("s_add_u32 s34, s34, s35")
    a("s_lshl_b32 s35, s30, 1")
    a("s_add_u32 s34, s34, s35")
    a("s_lshl_b32 s34, s34, 10")
    a("v_lshlrev_b32 v241, 4, v240")
    fl = CFG["h_store_flags"]
    k = 0
    for nt in range(8):
        for q in range(2):
            o = 128 + 4 * (k % 8)
            d0, d1 = ACC(2 * q, nt), ACC(2 * q + 1, nt)
            a(f"v_cvt_pk_bf16_f32 v{o}, v{d0}, v{d0 + 1}")
            a(f"v_cvt_pk_bf16_f32 v{o + 1}, v{d0 + 2}, v{d0 + 3}")
            a(f"v_cvt_pk_bf16_f32 v{o + 2}, v{d1}, v{d1 + 1}")
            a(f"v_cvt_pk_bf16_f32 v{o + 3}, v{d1 + 2}, v{d1 + 3}")
            for i in range(4):
                a(f"v_pk_max_i16 v{o + i}, v{o + i}, 0")
            a(f"buffer_store_dwordx4 v[{o}:{o + 3}], v241, s[20:23], s34 offen offset:{q * 1024} {fl}")
            k += 1
        if nt < 7:
            a(f"s_add_u32 s34, s34, {112 * 1024}")
    stamp(a, 3)
    if CFG["stamps"]:
        a("s_waitcnt vmcnt(0)")
    stamp(a, 4)
    stamp_flush(a, 0)
    a("s_endpgm")


def g1_loader(a):
    a("k1_g1_loader:")
    a("s_cmp_eq_u32 s24, 6")
    a("s_cbranch_scc1 k1_g1_ldw")
    a("v_lshrrev_b32 v241, 3, v240")
    a("v_and_b32 v242, 7, v240")
    a("v_xor_b32 v242, v242, v241")
    a("v_lshlrev_b32 v242, 4, v242")
    a("v_lshl_add_u32 v242, v241, 16, v242")
    a("s_sub_u32 s29, s24, 4")
    a("s_lshl_b32 s30, s27, 2")
    a("s_lshl_b32 s31, s29, 1")
    a("s_add_u32 s30, s30, s31")
    a("s_lshl_b32 s30, s30, 11")
    a("v_add_u32 v1, s30, v242")
    a("v_mov_b32 v2, v1")
    for j in range(16):
        a(f"s_mov_b32 s{40 + j}, {(j >> 3) * 2048 + (j & 7) * 524288 - (j & 3) * 1024}")
    a("s_mov_b32 s38, 128")
    a("s_lshl_b32 s39, s29, 14")
    for i in range(4):
        a(f"s_mov_b32 s{60 + i}, s{12 + i}")
    a("s_branch k1_g1_ldgo")
    a("k1_g1_ldw:")
    a("v_lshrrev_b32 v241, 4, v240")
    a("v_and_b32 v242, 15, v240")
    a("v_lshlrev_b32 v243, 1, v241")
    a("v_xor_b32 v242, v242, v243")
    a("v_lshlrev_b32 v242, 4, v242")
    a("v_mul_u32_u24 v243, 7168, v241")
    a("v_add_u32 v242, v242, v243")
    a("s_lshl_b32 s30, s28, 8")
    a("v_add_u32 v1, s30, v242")
    a("v_xor_b32 v2, 128, v1")
    for j in range(16):
        a(f"s_mov_b32 s{40 + j}, {4 * j * 7168 - (j & 3) * 1024}")
    a(f"s_mov_b32 s38, {64 * 7168}")
    a("s_mov_b32 s39, 32768")
    for i in range(4):
        a(f"s_mov_b32 s{60 + i}, s{16 + i}")
    a("k1_g1_ldgo:")
    vsel = lambda j: 2 if (j >> 1) & 1 else 1
    a("s_mov_b32 s36, 0")
    a("s_mov_b32 s37, s39")
    dma_stage(a, 16, vsel, 60, 36, 40, 37)
    a("s_add_u32 s36, s36, s38")
    a(f"s_add_u32 s37, s37, {G1_STAGE}")
    dma_stage(a, 16, vsel, 60, 36, 40, 37)
    a("s_mov_b32 s33, 2")
    a(f"s_add_u32 s35, s39, {G1_STAGE * G1_NST}")
    stamp(a, 1)
    a("s_waitcnt vmcnt(16)")
    stamp(a, 2)
    a("s_barrier")
    a("k1_g1_ldloop:")
    a(f"s_cmp_ge_u32 s33, {G1_STEPS}")
    a("s_cbranch_scc1 k1_g1_ldtail")
    a("s_add_u32 s36, s36, s38")
    a(f"s_add_u32 s37, s37, {G1_STAGE}")
    a("s_cmp_eq_u32 s37, s35")
    a("s_cselect_b32 s37, s39, s37")
    dma_stage(a, 16, vsel, 60, 36, 40, 37)
    a("s_waitcnt vmcnt(16)")
    a("s_barrier")
    a("s_add_u32 s33, s33, 1")
    a("s_branch k1_g1_ldloop")
    a("k1_g1_ldtail:")
    a("s_waitcnt vmcnt(0)")
    a("s_barrier")
    a("s_barrier")
    stamp(a, 3)
    stamp_flush(a, 0)
    a("s_endpgm")


def g1_prefetch(a):
    a("k1_g1_pf:")
    P = 5
    if CFG["prefetch"]:
        a("s_mul_i32 s29, s26, 37")
        a("v_add_u32 v241, s29, v240")
        a("v_lshrrev_b32 v242, 6, v241")
        a("v_and_b32 v243, 63, v241")
        a("s_and_b32 s30, s25, 1")
        a("s_lshl_b32 s30, s30, 4")
        a("v_add_u32 v242, s30, v242")
        a("v_lshl_add_u32 v242, v243, 5, v242")
        a("v_lshlrev_b32 v1, 11, v242")
        a("v_cmp_gt_u32 vcc, 37, v240")
        a("v_mov_b32 v244, 0x7f000000")
        a("s_nop 0")
        a("v_cndmask_b32 v1, v244, v1, vcc")
        a("v_cmp_gt_u32 vcc, 1024, v241")
        a("s_nop 1")
        a("v_cndmask_b32 v1, v244, v1, vcc")
        a("s_lshl_b32 s29, s26, 5")
        a("v_add_u32 v241, s29, v240")
        a("v_mul_u32_u24 v242, 4682, v241")
        a("v_lshrrev_b32 v242, 16, v242")
        a("v_mul_u32_u24 v243, 14, v242")
        a("v_sub_u32 v243, v241, v243")
        a("v_mul_u32_u24 v242, 7168, v242")
        a("v_lshl_add_u32 v242, v243, 7, v242")
        a("s_lshr_b32 s30, s25, 1")
        a("s_mul_i32 s30, s30, 1792")
        a("v_add_u32 v2, s30, v242")
        a("v_cmp_gt_u32 vcc, 32, v240")
        a("s_nop 1")
        a("v_cndmask_b32 v2, v244, v2, vcc")
        a("s_lshl_b32 s30, s2, 15")
        a("v_lshlrev_b32 v3, 7, v240")
        a("v_add_u32 v3, s30, v3")
        a("s_mov_b32 s36, 256")
        a(f"s_mov_b32 s37, {2 * 64 * 7168}")
        for _ in range(P):
            a("buffer_load_dword v10, v1, s[12:15], s36 offen")
            a("buffer_load_dword v11, v2, s[16:19], s37 offen")
            a("s_add_u32 s36, s36, 128")
            a(f"s_add_u32 s37, s37, {64 * 7168}")
    a("s_barrier")
    a("s_mov_b32 s33, 0")
    a("k1_g1_pfloop:")
    if CFG["prefetch"]:
        a(f"s_cmp_ge_u32 s33, {G1_STEPS - 2 - P}")
        a("s_cbranch_scc1 k1_g1_pfw2")
        a("buffer_load_dword v10, v1, s[12:15], s36 offen")
        a("buffer_load_dword v11, v2, s[16:19], s37 offen")
        a("s_add_u32 s36, s36, 128")
        a(f"s_add_u32 s37, s37, {64 * 7168}")
        a("s_branch k1_g1_pfbar")
        a("k1_g1_pfw2:")
        a(f"s_cmp_ge_u32 s33, {G1_STEPS - 2 - P + 4}")
        a("s_cbranch_scc1 k1_g1_pfbar")
        a(f"s_sub_u32 s38, s33, {G1_STEPS - 2 - P}")
        a("s_lshl_b32 s38, s38, 13")
        a("buffer_load_dword v12, v3, s[64:67], s38 offen")
        a("k1_g1_pfbar:")
    a("s_barrier")
    a("s_add_u32 s33, s33, 1")
    a(f"s_cmp_lt_u32 s33, {G1_STEPS}")
    a("s_cbranch_scc1 k1_g1_pfloop")
    a("s_waitcnt vmcnt(0)")
    a("s_endpgm")


def kernel1(a):
    a(f".globl k1_kernel\n.p2align 8\n.type k1_kernel,@function\nk1_kernel:")
    a("s_cmp_ge_u32 s2, 256")
    a("s_cbranch_scc1 k1_exit")
    if CFG["stamps"]:
        for j in range(1, 5):
            a(f"s_mov_b32 s{92 + 2 * j}, 0")
    stamp(a, 0)
    a(f"s_load_dwordx2 s[4:5], s[0:1], {KA_X}")
    a(f"s_load_dwordx2 s[6:7], s[0:1], {KA_W1}")
    a(f"s_load_dwordx2 s[8:9], s[0:1], {KA_WS}")
    a(f"s_load_dwordx2 s[10:11], s[0:1], {KA_W2}")
    a("v_lshrrev_b32 v1, 6, v0")
    a("v_and_b32 v240, 63, v0")
    a("s_and_b32 s25, s2, 7")
    a("s_lshr_b32 s26, s2, 3")
    a("v_readfirstlane_b32 s24, v1")
    a("s_and_b32 s27, s25, 1")
    a("s_lshl_b32 s27, s27, 2")
    a("s_and_b32 s28, s26, 3")
    a("s_add_u32 s27, s27, s28")
    a("s_lshr_b32 s28, s25, 1")
    a("s_mul_i32 s28, s28, 7")
    a("s_lshr_b32 s29, s26, 2")
    a("s_add_u32 s28, s28, s29")
    a("s_waitcnt lgkmcnt(0)")
    srd(a, 12, 4, S * D * 2)
    srd(a, 16, 6, D * F * 2)
    srd(a, 20, 8, H_BYTES, WS_H)
    srd(a, 64, 10, F * D * 2)
    a("s_cmp_lg_u32 s24, 7")
    a("s_cbranch_scc1 k1_noclear")
    srd(a, 68, 8, 256 * 128, WS_FLAG)
    a("v_and_b32 v241, 31, v240")
    a("v_lshlrev_b32 v241, 2, v241")
    a("s_lshl_b32 s29, s2, 7")
    a("v_mov_b32 v242, 0")
    a("buffer_store_dword v242, v241, s[68:71], s29 offen")
    a("k1_noclear:")
    a("s_cmp_ge_u32 s26, 28")
    a("s_cbranch_scc1 k1_fft")
    a("s_cmp_lt_u32 s24, 4")
    a("s_cbranch_scc1 k1_g1_compute")
    a("s_cmp_eq_u32 s24, 7")
    a("s_cbranch_scc1 k1_g1_pf")
    a(";@cut")
    g1_loader(a)
    a(";@cut")
    g1_prefetch(a)
    a(";@cut")
    g1_compute(a)
    a(";@cut")
    a("k1_fft:")
    if CFG["fft"]:
        from gen_fft import fft_front
        fft_front(a, CFG)
    a("k1_exit:")
    a("s_endpgm")


G2_STAGE = 32768
G2_NST = 4
G2_STEPS = 28


def g2_compute(a):
    ACCB = lambda mt, nt: 4 * (nt * 4 + mt)
    ACCA = lambda mt, nt: 64 + 4 * (nt * 4 + mt)
    PT, PW, QT, QW = 128, 144, 160, 176
    GC = 192
    VT, VW, VG = 224, 226, 232
    a("k2_compute:")
    a("s_and_b32 s29, s24, 1")
    a("s_lshr_b32 s30, s24, 1")
    a("v_and_b32 v241, 15, v240")
    a("v_lshrrev_b32 v242, 4, v240")
    a("s_lshl_b32 s31, s27, 7")
    a("s_lshl_b32 s34, s29, 6")
    a("s_add_u32 s31, s31, s34")
    a("v_add_u32 v243, s31, v241")
    a("v_lshlrev_b32 v243, 2, v243")
    for nt in range(4):
        a(f"buffer_load_dword v{VG + nt}, v243, s[68:71], 0 offen offset:{nt * 64}")
    if CFG["fft"]:
        a("v_cvt_f32_u32 v243, v241")
        a("v_mul_f32 v243, 0x3c800000, v243")
        a("v_cvt_f32_u32 v244, v242")
        a("v_mul_f32 v244, 4.0, v244")
        a("v_cvt_f32_u32 v245, s38")
        a("v_mul_f32 v245, 0x3e800000, v245")
        for nt in range(4):
            if nt:
                a("v_add_f32 v243, 0x3e800000, v243")
            a("v_fma_f32 v246, v243, v244, v245")
            a("v_mul_f32 v247, 0x41800000, v243")
            for hu in range(4):
                if hu:
                    a("v_add_f32 v246, v246, v247")
                a("v_mov_b32 v128, v246")
                for j in range(1, 4):
                    a(f"v_add_f32 v{128 + j}, v{127 + j}, v243")
                for j in range(4):
                    a(f"v_cos_f32 v{128 + j}, v{128 + j}")
                a("s_nop 0")
                r = GC + (nt * 2 + (hu >> 1)) * 4 + 2 * (hu & 1)
                a(f"v_cvt_pk_bf16_f32 v{r}, v128, v129")
                a(f"v_cvt_pk_bf16_f32 v{r + 1}, v130, v131")
    a("v_lshlrev_b32 v243, 4, v240")
    a("s_lshl_b32 s31, s29, 12")
    a(f"v_add_u32 v{VT}, s31, v243")
    a("v_bfe_u32 v243, v240, 2, 2")
    a("v_and_b32 v244, 3, v240")
    a("v_and_b32 v245, 1, v242")
    a("v_lshl_add_u32 v245, v245, 2, v243")
    a("v_lshl_add_u32 v246, v242, 2, v243")
    a("v_lshlrev_b32 v246, 8, v246")
    a("v_and_b32 v247, 1, v244")
    a("v_lshl_add_u32 v246, v247, 3, v246")
    a("v_add_u32 v246, 16384, v246")
    a("v_lshrrev_b32 v247, 1, v244")
    a("s_lshl_b32 s31, s30, 3")
    a("v_add_u32 v247, s31, v247")
    a("v_lshlrev_b32 v245, 1, v245")
    a("v_xor_b32 v247, v247, v245")
    for mt in range(4):
        a(f"v_xor_b32 v248, {2 * mt}, v247")
        a(f"v_lshl_add_u32 v{VW + mt}, v248, 4, v246")
    for i in range(64):
        a(f"v_mov_b32 v{i}, 0")

    def reads(T, W, h, with_t=True):
        tw = lambda mt, u: f"ds_read_b64_tr_b16 v[{W + 4 * mt + 2 * u}:{W + 4 * mt + 2 * u + 1}], v{VW + mt} offset:{h * 8192 + u * 4096}"
        tt = lambda nt: f"ds_read_b128 v[{T + 4 * nt}:{T + 4 * nt + 3}], v{VT} offset:{h * 8192 + nt * 1024}"
        r = [tw(0, 0), tw(0, 1)]
        if with_t:
            r += [tt(0)]
        r += [tw(1, 0), tw(1, 1), tw(2, 0), tw(2, 1), tw(3, 0), tw(3, 1)]
        if with_t:
            r += [tt(1), tt(2), tt(3)]
        return r

    def half(acc, Tf, W, rd, extra=(), first=False):
        rd, extra = list(rd), list(extra)
        for nt in range(4):
            for mt in range(4):
                d = acc(mt, nt)
                c = "0" if first else f"v[{d}:{d + 3}]"
                t = Tf(nt)
                a(f"{MF16} v[{d}:{d + 3}], v[{W + 4 * mt}:{W + 4 * mt + 3}], v[{t}:{t + 3}], {c}")
                for _ in range(2):
                    if rd:
                        a(rd.pop(0))
                    elif extra:
                        a(extra.pop(0))

    a("s_mov_b32 s32, 0")
    a(f"s_mov_b32 s33, {G2_STEPS}")
    a("s_sub_u32 s36, s29, 1")
    a("s_lshl_b32 s36, s36, 14")
    a("s_barrier")
    stamp(a, 1)
    for t in reads(PT, PW, 0):
        a(t)
    a("s_waitcnt lgkmcnt(0)")
    a(";@loop")
    a("k2_loop:")
    adv = [f"s_add_u32 s34, s32, {G2_STAGE}",
           f"s_cmp_eq_u32 s34, {G2_STAGE * G2_NST}",
           "s_cselect_b32 s34, 0, s34",
           "s_sub_u32 s35, s34, s32",
           "s_mov_b32 s32, s34",
           f"v_add_u32 v{VT}, s35, v{VT}",
           "s_cmp_eq_u32 s33, 1",
           "s_cselect_b32 s37, s36, 0",
           "s_add_u32 s35, s35, s37"]
    adv += [f"v_add_u32 v{VW + i}, s35, v{VW + i}" for i in range(4)]
    half(ACCB, lambda nt: PT + 4 * nt, PW, reads(QT, QW, 1), adv)
    a("s_waitcnt lgkmcnt(0)")
    a("s_barrier")
    half(ACCB, lambda nt: QT + 4 * nt, QW, reads(PT, PW, 0))
    a("s_sub_u32 s33, s33, 1")
    a("s_cmp_lg_u32 s33, 0")
    a("s_waitcnt lgkmcnt(0)")
    a("s_cbranch_scc1 k2_loop")
    a(";@endloop")
    if CFG["fft"]:
        a("s_waitcnt vmcnt(0)")
        half(ACCA, lambda nt: GC + (nt * 2) * 4, PW, reads(QT, QW, 1, with_t=False), first=True)
        a("s_waitcnt lgkmcnt(0)")
        half(ACCA, lambda nt: GC + (nt * 2 + 1) * 4, QW, [])
    else:
        a("s_waitcnt vmcnt(0)")
        for i in range(64):
            a(f"v_mov_b32 v{64 + i}, 0")
    a("s_nop 7")
    stamp(a, 2)
    for nt in range(4):
        for mt in range(4):
            for i in range(4):
                b, f_ = ACCB(mt, nt) + i, ACCA(mt, nt) + i
                a(f"v_sub_f32 v{f_}, v{f_}, v{b}")
        for mt in range(4):
            for i in range(4):
                b, f_ = ACCB(mt, nt) + i, ACCA(mt, nt) + i
                a(f"v_fmac_f32 v{b}, v{VG + nt}, v{f_}")
    a("s_cmp_eq_u32 s38, 0")
    a("s_cbranch_scc1 k2_noswap")
    for i in range(32):
        a(f"v_swap_b32 v{i}, v{32 + i}")
    a("k2_noswap:")
    a("v_lshlrev_b32 v241, 4, v240")
    a("s_lshl_b32 s34, s2, 15")
    a("s_lshl_b32 s35, s24, 13")
    a("s_add_u32 s34, s34, s35")
    for i in range(8):
        if i == 4:
            a("s_add_u32 s34, s34, 4096")
        a(f"buffer_store_dwordx4 v[{32 + 4 * i}:{35 + 4 * i}], v241, s[76:79], s34 offen offset:{(i % 4) * 1024} sc1")
    a("s_waitcnt vmcnt(0)")
    a("s_barrier")
    a("s_cmp_lg_u32 s24, 0")
    a("s_cbranch_scc1 k2_nopoll")
    a("v_mov_b32 v242, 1")
    a("s_lshl_b32 s34, s2, 7")
    a("v_mov_b32 v243, s34")
    a("buffer_store_dword v242, v243, s[80:83], 0 offen sc1")
    a("s_lshl_b32 s34, s39, 7")
    a("v_mov_b32 v243, s34")
    a("s_mov_b32 s35, 0x200000")
    a("k2_poll:")
    a("buffer_load_dword v242, v243, s[80:83], 0 offen sc1")
    a("s_waitcnt vmcnt(0)")
    a("v_readfirstlane_b32 s34, v242")
    a("s_sub_u32 s35, s35, 1")
    a("s_cmp_eq_u32 s35, 0")
    a("s_cbranch_scc1 k2_nopoll")
    a("s_cmp_eq_u32 s34, 1")
    a("s_cbranch_scc0 k2_poll")
    a("k2_nopoll:")
    a("s_barrier")
    stamp(a, 3)
    a("s_lshl_b32 s34, s39, 15")
    a("s_lshl_b32 s35, s24, 13")
    a("s_add_u32 s34, s34, s35")
    for i in range(8):
        if i == 4:
            a("s_add_u32 s34, s34, 4096")
        a(f"buffer_load_dwordx4 v[{64 + 4 * i}:{67 + 4 * i}], v241, s[76:79], s34 offen offset:{(i % 4) * 1024} sc1")
    a("v_and_b32 v242, 15, v240")
    a("v_lshrrev_b32 v243, 4, v240")
    a("v_lshlrev_b32 v242, 16, v242")
    a("v_and_b32 v244, 1, v243")
    a("v_lshlrev_b32 v244, 5, v244")
    a("v_lshrrev_b32 v243, 1, v243")
    a("v_lshl_add_u32 v244, v243, 4, v244")
    a("v_add_u32 v242, v242, v244")
    a("s_lshl_b32 s34, s27, 1")
    a("s_add_u32 s34, s34, s29")
    a("s_lshl_b32 s34, s34, 11")
    a("s_lshl_b32 s35, s38, 21")
    a("s_add_u32 s34, s34, s35")
    a("s_lshl_b32 s35, s28, 8")
    a("s_add_u32 s34, s34, s35")
    a("s_lshl_b32 s35, s30, 7")
    a("s_add_u32 s34, s34, s35")
    for j in range(2):
        for q in range(2):
            i0 = (j * 4 + 2 * q)
            a(f"s_waitcnt vmcnt({8 - (i0 + 2) + (j * 2 + q)})")
            o = 128 + 4 * (j * 2 + q)
            for tl in range(2):
                for i in range(4):
                    r = 4 * (i0 + tl) + i
                    a(f"v_add_f32 v{r}, v{r}, v{64 + r}")
                r = 4 * (i0 + tl)
                a(f"v_cvt_pk_bf16_f32 v{o + 2 * tl}, v{r}, v{r + 1}")
                a(f"v_cvt_pk_bf16_f32 v{o + 2 * tl + 1}, v{r + 2}, v{r + 3}")
            a("s_nop 1")
            a(f"v_permlane16_swap_b32 v{o}, v{o + 2}")
            a(f"v_permlane16_swap_b32 v{o + 1}, v{o + 3}")
            a(f"buffer_store_dwordx4 v[{o}:{o + 3}], v242, s[84:87], s34 offen offset:{q * 64}")
        if j == 0:
            a(f"s_add_u32 s34, s34, {16 * 32 * 2048}")
    if CFG["stamps"]:
        a("s_waitcnt vmcnt(0)")
    stamp(a, 4)
    stamp_flush(a, 1)
    a("s_endpgm")


def g2_loader(a):
    a("k2_loader:")
    a("s_cmp_eq_u32 s24, 5")
    a("s_cbranch_scc1 k2_ldw")
    a("v_lshlrev_b32 v241, 4, v240")
    a("s_lshl_b32 s30, s27, 3")
    a("s_mul_i32 s30, s30, 112")
    a("s_mul_i32 s31, s38, 56")
    a("s_add_u32 s30, s30, s31")
    a("s_lshl_b32 s30, s30, 10")
    a("v_add_u32 v1, s30, v241")
    a("v_mov_b32 v2, v1")
    for j in range(16):
        a(f"s_mov_b32 s{40 + j}, {(j & 7) * 114688 + (j >> 3) * 1024 - (j & 3) * 1024}")
    a("s_mov_b32 s36, 2048")
    a("s_mov_b32 s37, 0")
    for i in range(4):
        a(f"s_mov_b32 s{60 + i}, s{12 + i}")
    a("s_branch k2_ldgo")
    a("k2_ldw:")
    a("v_lshrrev_b32 v241, 4, v240")
    a("v_and_b32 v242, 15, v240")
    a("v_lshlrev_b32 v243, 1, v241")
    a("v_xor_b32 v242, v242, v243")
    a("v_lshlrev_b32 v242, 4, v242")
    a("v_lshl_add_u32 v242, v241, 11, v242")
    a(f"s_mul_i32 s30, s38, {1792 * 2048}")
    a("s_lshl_b32 s31, s28, 8")
    a("s_add_u32 s30, s30, s31")
    a("v_add_u32 v1, s30, v242")
    a("v_xor_b32 v2, 128, v1")
    for j in range(16):
        a(f"s_mov_b32 s{40 + j}, {4 * j * 2048 - (j & 3) * 1024}")
    a(f"s_mov_b32 s36, {64 * 2048}")
    a("s_mov_b32 s37, 16384")
    for i in range(4):
        a(f"s_mov_b32 s{60 + i}, s{16 + i}")
    a("k2_ldgo:")
    a("v_lshrrev_b32 v241, 4, v240")
    a("v_and_b32 v242, 15, v240")
    a("v_lshlrev_b32 v243, 1, v241")
    a("v_xor_b32 v242, v242, v243")
    a("v_lshlrev_b32 v242, 4, v242")
    a("v_lshl_add_u32 v242, v241, 17, v242")
    a("s_lshl_b32 s30, s27, 1")
    a("s_add_u32 s30, s30, s24")
    a("s_sub_u32 s30, s30, 4")
    a("s_lshl_b32 s30, s30, 1")
    a("s_add_u32 s30, s30, s38")
    a("s_lshl_b32 s30, s30, 11")
    a("s_lshl_b32 s31, s28, 8")
    a("s_add_u32 s30, s30, s31")
    a("v_add_u32 v3, s30, v242")
    a("v_xor_b32 v4, 128, v3")
    vsel = lambda j: 2 if j & 1 else 1
    a("s_mov_b32 s34, 0")
    a("s_mov_b32 s35, s37")
    for st in range(G2_NST - 1):
        dma_stage(a, 16, vsel, 60, 34, 40, 35)
        a("s_add_u32 s34, s34, s36")
        a(f"s_add_u32 s35, s35, {G2_STAGE}")
    a(f"s_mov_b32 s33, {G2_NST - 1}")
    a(f"s_add_u32 s31, s37, {G2_STAGE * G2_NST}")
    a(f"s_waitcnt vmcnt({16 * (G2_NST - 2)})")
    a("s_barrier")
    a("k2_ldloop:")
    dma_stage(a, 16, vsel, 60, 34, 40, 35)
    a("s_add_u32 s34, s34, s36")
    a(f"s_add_u32 s35, s35, {G2_STAGE}")
    a("s_cmp_eq_u32 s35, s31")
    a("s_cselect_b32 s35, s37, s35")
    a(f"s_waitcnt vmcnt({16 * (G2_NST - 2)})")
    a("s_barrier")
    a("s_add_u32 s33, s33, 1")
    a(f"s_cmp_lt_u32 s33, {G2_STEPS}")
    a("s_cbranch_scc1 k2_ldloop")
    if CFG["fft"]:
        for j in range(16):
            if j % 4 == 0:
                a(f"s_add_u32 m0, s35, {j * 1024}")
            a(f"s_mov_b32 s56, {4 * j * 131072 - (j & 3) * 1024}")
            a(f"buffer_load_dwordx4 v{4 if j & 1 else 3}, s[20:23], s56 offen offset:{(j % 4) * 1024} lds")
        a(f"s_waitcnt vmcnt({16 * (G2_NST - 2)})")
        a("s_barrier")
        a("s_waitcnt vmcnt(16)")
        a("s_barrier")
        a("s_waitcnt vmcnt(0)")
        a("s_barrier")
    else:
        a("s_waitcnt vmcnt(16)")
        a("s_barrier")
        a("s_waitcnt vmcnt(0)")
        a("s_barrier")
        a("s_barrier")
    a("s_endpgm")


def kernel2(a):
    a(f".globl k2_kernel\n.p2align 8\n.type k2_kernel,@function\nk2_kernel:")
    a("s_cmp_ge_u32 s2, 256")
    a("s_cbranch_scc1 k2_exit")
    if CFG["stamps"]:
        for j in range(1, 5):
            a(f"s_mov_b32 s{92 + 2 * j}, 0")
    stamp(a, 0)
    a(f"s_load_dwordx2 s[4:5], s[0:1], {KA_W2}")
    a(f"s_load_dwordx2 s[6:7], s[0:1], {KA_OUT}")
    a(f"s_load_dwordx2 s[8:9], s[0:1], {KA_WS}")
    a("v_lshrrev_b32 v1, 6, v0")
    a("v_and_b32 v240, 63, v0")
    a("s_and_b32 s25, s2, 7")
    a("s_lshr_b32 s26, s2, 3")
    a("v_readfirstlane_b32 s24, v1")
    a("s_and_b32 s38, s25, 1")
    a("s_xor_b32 s39, s2, 1")
    a("s_bfe_u32 s28, s25, 0x10001")
    a("s_lshl_b32 s28, s28, 2")
    a("s_and_b32 s29, s26, 3")
    a("s_add_u32 s28, s28, s29")
    a("s_lshr_b32 s27, s25, 2")
    a("s_lshl_b32 s27, s27, 3")
    a("s_lshr_b32 s29, s26, 2")
    a("s_add_u32 s27, s27, s29")
    a("s_waitcnt lgkmcnt(0)")
    srd(a, 12, 8, H_BYTES, WS_H)
    srd(a, 16, 4, F * D * 2)
    srd(a, 20, 8, YY_BYTES, WS_YY)
    srd(a, 68, 8, S * 4, WS_G)
    srd(a, 76, 8, PART_BYTES, WS_PART)
    srd(a, 80, 8, 256 * 128, WS_FLAG)
    srd(a, 84, 6, S * D * 2)
    a("s_cmp_lt_u32 s24, 4")
    a("s_cbranch_scc1 k2_compute")
    a("s_cmp_lt_u32 s24, 6")
    a("s_cbranch_scc1 k2_loader")
    a(f"s_mov_b32 s33, {G2_STEPS + 1}")
    a("k2_idle:")
    a("s_barrier")
    a("s_sub_u32 s33, s33, 1")
    a("s_cmp_lg_u32 s33, 0")
    a("s_cbranch_scc1 k2_idle")
    a("s_endpgm")
    a(";@cut")
    g2_loader(a)
    a(";@cut")
    g2_compute(a)
    a("k2_exit:")
    a("s_endpgm")


def descriptor(name):
    return f""".amdhsa_kernel {name}
  .amdhsa_next_free_vgpr 256
  .amdhsa_next_free_sgpr 102
  .amdhsa_accum_offset 256
  .amdhsa_group_segment_fixed_size 0
  .amdhsa_kernarg_size 96
  .amdhsa_user_sgpr_count 2
  .amdhsa_user_sgpr_kernarg_segment_ptr 1
  .amdhsa_system_sgpr_workgroup_id_x 1
.end_amdhsa_kernel
"""


def header():
    ref = open(f"cdna_kernels/{NAME}.s.ref").read().split("\n")
    keep = [l for l in ref[:14] if l.startswith(";")]
    out = "\n".join(keep) + "\n"
    out += f"; @launch kernel=k1_kernel grid=(256,1,1) block=(512,1,1) lds={G1_STAGE * G1_NST}\n"
    out += f"; @launch kernel=k2_kernel grid=(256,1,1) block=(512,1,1) lds={G2_STAGE * G2_NST}\n"
    out += '.amdgcn_target "amdgcn-amd-amdhsa--gfx950"\n.text\n'
    return out


def build(**cfg):
    CFG.update(cfg)
    a1, a2 = Asm(), Asm()
    kernel1(a1)
    kernel2(a2)
    n = check(a1.lines, "k1") + check(a2.lines, "k2")
    if n:
        raise SystemExit(f"{n} hazards")
    txt = header() + a1.text() + ".text\n" + a2.text()
    txt += '.section .rodata,"a"\n.p2align 6\n' + descriptor("k1_kernel") + ".p2align 6\n" + descriptor("k2_kernel")
    return txt


if __name__ == "__main__":
    sys.modules["gen"] = sys.modules["__main__"]
    cfg = {}
    out = f"cdna_kernels/{NAME}.s"
    for arg in sys.argv[1:]:
        if arg.startswith("-o="):
            out = arg[3:]
        else:
            k, val = arg.split("=", 1)
            cfg[k] = {"True": True, "False": False}.get(val, val)
    open(out, "w").write(build(**cfg))
    print("wrote", out)
```
